```python
import torch

def _softmax(x, axis=-1):
    return torch.softmax(x, dim=axis)

def _gelu(x):
    return torch.nn.functional.gelu(x, approximate='tanh')

def _silu(x):
    return torch.nn.functional.silu(x)

def _sigmoid(x):
    return torch.sigmoid(x)

def _layernorm(x, axis=-1, eps=1e-05):
    m = x.mean(dim=axis, keepdim=True)
    v = x.var(dim=axis, keepdim=True, unbiased=False)
    return (x - m) / torch.sqrt(v + eps)

def _scatter_add(tgt, idx, src, axis=0):
    return tgt.clone().index_add_(axis, idx, src)

def _segment_sum(src, seg, n):
    out = torch.zeros((n,) + src.shape[1:], dtype=src.dtype)
    return out.index_add_(0, seg, src)

def _pad(x, pw):
    flat = tuple((v for pair in reversed(pw) for v in pair))
    return torch.nn.functional.pad(x, flat)
kernel_name = 'adaLN_cond__sliding_block_cached__geglu_ffn__decode'

def setup_inputs():

    _w = lambda a: (lambda t: t.to(torch.bfloat16) if t.is_floating_point() else t)(torch.as_tensor(a))

    def _A_setup():
        B, Sq, D = (1, 1, 448)
        Hq, Hkv, Sk, Dh = (16, 8, 32768, 256)
        assert Hq % Hkv == 0, (Hq, Hkv)
        return {'x': _w((lambda *s: torch.randn(*s, dtype=torch.bfloat16) * 0.05)(B, Sq, D)), 'k_cache': _w((lambda *s: torch.randn(*s, dtype=torch.bfloat16) * 3.2)(B, Hkv, Sk, Dh)), 'v_cache': _w((lambda *s: torch.randn(*s, dtype=torch.bfloat16) * 0.4)(B, Hkv, Sk, Dh)), 'wq': _w((lambda *s: torch.randn(*s, dtype=torch.bfloat16) * 3.2)(D, Hq * Dh) * D ** (-0.5)), 'wo': _w((lambda *s: torch.randn(*s, dtype=torch.bfloat16) * 0.4)(Hq * Dh, D) * (Hq * Dh) ** (-0.5))}
    _A_in = _A_setup()

    def _B_setup():
        B, S, D, F = (1, 1, 448, 1792)
        return {'x': _w((lambda *s: torch.randn(*s, dtype=torch.bfloat16) * 0.05)(B, S, D)), 'w_gate': _w((lambda *s: torch.randn(*s, dtype=torch.bfloat16) * 0.05)(D, F)), 'w_up': _w((lambda *s: torch.randn(*s, dtype=torch.bfloat16) * 0.05)(D, F)), 'w_down': _w((lambda *s: torch.randn(*s, dtype=torch.bfloat16) * 0.05)(F, D))}
    _B_in = _B_setup()
    return {'A_x': _A_in['x'], 'A_k_cache': _A_in['k_cache'], 'A_v_cache': _A_in['v_cache'], 'A_wq': _A_in['wq'], 'A_wo': _A_in['wo'], 'B_x': _B_in['x'], 'B_w_gate': _B_in['w_gate'], 'B_w_up': _B_in['w_up'], 'B_w_down': _B_in['w_down'], 'c': _w((lambda *s: torch.randn(*s, dtype=torch.bfloat16) * 0.1)(1, 448) * 8.0), 'w_mod': _w((lambda *s: torch.randn(*s, dtype=torch.bfloat16) * 0.1)(448, 6 * 448) * 448 ** (-0.5) * 8.0)}

def reference(A_x, A_k_cache, A_v_cache, A_wq, A_wo, B_x, B_w_gate, B_w_up, B_w_down, c, w_mod):

    def _A_ref(x, k_cache, v_cache, wq, wo):
        B, Sq, D = x.shape
        Hq, Dh = (16, 256)
        Hkv, Sk = (k_cache.shape[1], k_cache.shape[2])
        W = min(4096, max(256, Sk // 4))
        rep = Hq // Hkv
        q = (lambda x, *d: x.permute(*d))((x @ wq).reshape(B, Sq, Hq, Dh), 0, 2, 1, 3)
        k = (lambda x, n, axis: torch.repeat_interleave(x, n, dim=axis))(k_cache[:, :, Sk - W:, :], rep, axis=1)
        v = (lambda x, n, axis: torch.repeat_interleave(x, n, dim=axis))(v_cache[:, :, Sk - W:, :], rep, axis=1)
        scores = torch.einsum('bhqd,bhkd->bhqk', q, k) * Dh ** (-0.5)
        p = _softmax(scores, axis=-1)
        o = torch.einsum('bhqk,bhkd->bhqd', p, v)
        return (lambda x, *d: x.permute(*d))(o, 0, 2, 1, 3).reshape(B, Sq, Hq * Dh) @ wo

    def _B_ref(x, w_gate, w_up, w_down):
        return _gelu(x @ w_gate) * (x @ w_up) @ w_down
    x = A_x
    mod = (_silu(c) @ w_mod).reshape(c.shape[0], 6, 1, -1)
    sa, ca, ga, sb, cb, gb = (mod[:, 0].clone(), mod[:, 1].clone(), mod[:, 2].clone(), mod[:, 3].clone(), mod[:, 4].clone(), mod[:, 5].clone())
    h = _layernorm(x, axis=-1) * (1 + ca) + sa
    x = x + ga * _A_ref(h, A_k_cache, A_v_cache, A_wq, A_wo)
    h = _layernorm(x, axis=-1) * (1 + cb) + sb
    x = x + gb * _B_ref(h, B_w_gate, B_w_up, B_w_down)
    return x
```

```python
import re
TRANS = ('v_exp_f32','v_log_f32','v_rcp_f32','v_rsq_f32','v_sqrt_f32','v_sin_f32','v_cos_f32','v_rcp_iflag_f32')
def regs_of(tok):
    tok = tok.strip()
    tok = re.sub(r'^-|^abs\(|\)$|^\|', '', tok).strip('|')
    m = re.fullmatch(r'([vsa])(\d+)', tok)
    if m: return {(m.group(1), int(m.group(2)))}
    m = re.fullmatch(r'([vsa])\[(\d+):(\d+)\]', tok)
    if m: return {(m.group(1), i) for i in range(int(m.group(2)), int(m.group(3))+1)}
    if tok == 'vcc': return {('s','vcc')}
    if tok in ('vcc_lo','vcc_hi'): return {('s','vcc')}
    if tok == 'm0': return {('s','m0')}
    if tok == 'exec': return {('s','exec')}
    return set()
def split_ops(rest):
    out, depth, cur = [], 0, ''
    for ch in rest:
        if ch == '[': depth += 1
        if ch == ']': depth -= 1
        if ch == ',' and depth == 0: out.append(cur); cur = ''
        else: cur += ch
    out.append(cur)
    last = out[-1].strip().split(' ')
    mods = ' '.join(last[1:])
    out[-1] = last[0]
    return [o.strip() for o in out], mods
class Ins:
    def __init__(self, text):
        self.text = text
        t = text.split(';')[0].strip()
        self.label = t.endswith(':')
        self.dir = t.startswith('.') or t == ''
        self.mn = '' if (self.label or self.dir) else t.split()[0]
        self.w, self.r = set(), set()
        self.kind = None; self.dpp = False; self.states = 1
        self.mA = self.mB = self.mC = set()
        if not self.mn: self.states = 0; return
        mn = self.mn
        rest = t[len(mn):].strip()
        ops, mods = split_ops(rest) if rest else ([], '')
        R = [regs_of(o) for o in ops]
        U = lambda l: set().union(*l) if l else set()
        if mn == 's_nop': self.states = int(ops[0], 0) + 1; self.kind = 'nop'; return
        if mn.startswith('v_mfma'):
            self.kind = 'mfma'; self.w = R[0]; self.mA, self.mB, self.mC = R[1], R[2], R[3]; self.r = U(R[1:])
            self.passes = 8 if '32x32x16' in mn else 4
        elif mn.startswith('v_'):
            self.kind = 'valu'
            self.dpp = ('_dpp' in mn) or any(k in mods for k in ('row_shr','row_ror','row_bcast','quad_perm','row_mirror','row_half_mirror','row_newbcast','row_shl'))
            base = re.sub(r'_(e32|e64|dpp|sdwa)$', '', mn)
            self.base = base
            self.trans = base in TRANS
            if base.startswith('v_permlane') and 'swap' in base:
                self.w = U(R[:2]); self.r = U(R[:2]); self.perm = True
            elif base.startswith('v_cmp'):
                self.w = R[0]; self.r = U(R[1:])
            elif base in ('v_add_co_u32','v_addc_co_u32','v_sub_co_u32'):
                self.w = U(R[:2]); self.r = U(R[2:])
            else:
                self.w = R[0]; self.r = U(R[1:])
                if base in ('v_fmac_f32','v_writelane_b32','v_dot2c_f32_bf16') or self.dpp: self.r |= R[0]
                if base == 'v_cndmask_b32' and len(ops) == 3: self.r |= {('s','vcc')}
        elif mn.startswith('ds_'):
            self.kind = 'ds'
            if mn.startswith('ds_read') or 'rtn' in mn or 'permute' in mn or 'swizzle' in mn: self.w = R[0]; self.r = U(R[1:])
            else: self.r = U(R)
        elif mn.startswith('buffer_') or mn.startswith('global_'):
            self.kind = 'vmem'
            self.lds = ' lds' in (' ' + mods) or 'load_lds' in mn
            if 'load' in mn and not self.lds: self.w = R[0]; self.r = U(R[1:])
            else: self.r = U(R)
            if self.lds: self.r |= {('s','m0')}
            self.wide_store = ('store' in mn and ('x4' in mn or 'x3' in mn))
            self.sdata = R[0] if ('store' in mn and mn.startswith('buffer_')) else (R[1] if 'store' in mn else set())
        elif mn.startswith('s_'):
            self.kind = 'salu'
            if mn.startswith(('s_cmp','s_cbranch','s_branch','s_waitcnt','s_barrier','s_endpgm','s_sleep','s_setprio')): self.r = U(R)
            else: self.w = R[0] if R else set(); self.r = U(R[1:])
def need(prev, cur):
    n = 0
    vw = {x for x in prev.w if x[0] in 'va'}; sw = {x for x in prev.w if x[0] == 's'}
    if prev.kind == 'valu':
        if cur.kind == 'valu':
            if cur.dpp and vw & cur.r: n = max(n, 2)
            if getattr(cur,'perm',False) and vw & cur.r: n = max(n, 2)
            if cur.base in ('v_readlane_b32','v_readfirstlane_b32') and vw & cur.r: n = max(n, 1)
            if prev.trans and vw & cur.r: n = max(n, 1)
            if sw & cur.r: n = max(n, 4 if cur.base in ('v_readlane_b32','v_writelane_b32') else 2)
        if cur.kind == 'mfma' and vw & cur.r: n = max(n, 2)
        if cur.kind == 'vmem' and sw & cur.r: n = max(n, 5)
        if cur.kind in ('ds','vmem') and prev.trans and vw & cur.r: n = max(n, 1)
        if cur.kind == 'salu' and sw & cur.r: n = max(n, 1)
    if prev.kind == 'mfma':
        big = 8 if prev.passes == 4 else 12
        if cur.kind == 'mfma':
            if prev.w & (cur.mA | cur.mB): n = max(n, big)
            if prev.w & cur.mC and prev.w != cur.mC: n = max(n, big - 2)
            if prev.w & cur.w and prev.w != cur.mC: n = max(n, big)
        elif cur.kind in ('valu','ds','vmem'):
            if prev.w & (cur.r | cur.w): n = max(n, big)
            if cur.kind == 'valu' and prev.mC & cur.w: n = max(n, 3 if prev.passes == 4 else 7)
    if prev.kind == 'salu' and ('s','m0') in prev.w and cur.kind == 'vmem' and cur.lds: n = max(n, 1)
    if prev.kind == 'vmem' and prev.wide_store and cur.kind in ('valu','mfma') and prev.sdata & cur.w: n = max(n, 2)
    if prev.kind == 'vmem' and prev.wide_store and cur.kind in ('ds','vmem') and prev.sdata & cur.w: n = max(n, 1)
    return n
def pad(lines):
    out = []; hist = []
    for t in lines:
        ins = Ins(t)
        if ins.mn and ins.kind != 'nop':
            req = 0; dist = 0
            for p in reversed(hist):
                if dist >= 13: break
                if p.mn in ('s_endpgm', 's_branch'): break
                k = need(p, ins) - dist
                req = max(req, k)
                dist += p.states
            if req > 0:
                nop = Ins(f's_nop {req-1}'); out.append(nop.text + ' ; hz'); hist.append(nop)
        out.append(t)
        if ins.mn: hist.append(ins)
    return out
```

```python
import sys
from asmlib import pad
KN = 'adaLN_cond__sliding_block_cached__geglu_ffn__decode_kernel'

KREG, WQ, VREG, MISC = 0, 16384, 81920, 147456
F_PROG = 0
F_T, F_X, F_H, F_Q, F_ML, F_P, F_KFREE, F_AFREE, F_VFREE = [256 + 4*i for i in range(9)]
ML = 320; ZERO = 512; QL = 1024; PL = 2048; HL = 4096; XS = 5120; OL = 7168; STG = 8192; ACT = 8704
LDS_BYTES = 157440
MA, MB, MS, MZ, MC, MD, MF, MM = 0x1000, 0x8000, 0x10000, 0x50000, 0x70000, 0x90000, 0xAC000, 0xC4800
STAMP = 0x10000000
SENT = 0x7fdead01
PHI = 0x9E3779B9
C2 = 0x3DB8AA3B
LOG2E = 0x3FB8AA3B
WIN0 = (32768 - 4096) * 512

def gen(D=24, prof=False, TMO=0x40000, samexcd=True):
    L = []; A = L.append
    uid = [0]
    def lab(s): uid[0] += 1; return f'L_{s}_{uid[0]}'
    def stamp(i):
        if prof:
            A('s_memrealtime s[62:63]'); A('s_waitcnt lgkmcnt(0)'); A(f'v_writelane_b32 v250, s62, {i}')
    def end():
        A('s_branch L_fin' if prof else 's_endpgm')
    def srd(r, ptr, size):
        A(f's_mov_b32 s{r}, s{ptr}'); A(f's_mov_b32 s{r+1}, s{ptr+1}'); A(f's_mov_b32 s{r+2}, {size}'); A(f's_mov_b32 s{r+3}, 0x20000')
    def wait_flag(off, val, sleep=1, keep=None):
        l0, l1 = lab('wf'), lab('wd')
        A(f's_mov_b32 s14, {TMO}')
        A(f'{l0}:')
        A(f'ds_read_b32 v3, v2 offset:{off}')
        A('s_waitcnt lgkmcnt(0)')
        if keep:
            A(f'v_readfirstlane_b32 {keep}, v3'); A(f's_cmp_ge_i32 {keep}, {val}'); A(f's_cbranch_scc1 {l1}')
        else:
            A(f'v_cmp_le_i32 vcc, {val}, v3'); A(f's_cbranch_vccnz {l1}')
        if sleep: A(f's_sleep {sleep}')
        A('s_sub_u32 s14, s14, 1'); A(f's_cbranch_scc0 {l0}')
        A(f'{l1}:')
    def flag_add(off):
        A('s_mov_b64 exec, 1'); A('v_mov_b32 v3, 1'); A(f'ds_add_u32 v2, v3 offset:{off}'); A('s_mov_b64 exec, -1')
    def R(d, s): A(f'v_cvt_pk_bf16_f32 {d}, 0, {s}')
    def dpp(op, d, s0, s1, ctl): A(f'{op}_dpp {d}, {s0}, {s1} {ctl}')
    ROR = lambda k: f'row_ror:{k} row_mask:0xf bank_mask:0xf'
    def wave_red(op, regs, sdst):
        for k in (1, 2, 4, 8):
            for r in regs: dpp(op, r, r, r, ROR(k))
        for r in regs: dpp(op, r, r, r, 'row_bcast:15 row_mask:0xa bank_mask:0xf')
        for r in regs: dpp(op, r, r, r, 'row_bcast:31 row_mask:0xc bank_mask:0xf')
        for r, s in zip(regs, sdst): A(f'v_readlane_b32 {s}, {r}, 63')
    def tile128_voff(dE, dO, stride):
        A('v_lshrrev_b32 v3, 3, v0'); A(f'v_mul_u32_u24 {dE}, {stride}, v3')
        A('v_bfe_u32 v3, v0, 4, 1'); A('v_lshlrev_b32 v3, 1, v3'); A('v_and_b32 v4, 7, v0'); A('v_xor_b32 v3, v3, v4')
        A(f'v_lshl_add_u32 {dE}, v3, 4, {dE}'); A(f'v_xor_b32 {dO}, 64, {dE}')
    def tr128_addr(d, base, ct):
        A('v_lshrrev_b32 v3, 2, v16'); A('v_lshl_add_u32 v3, v17, 3, v3'); A(f'v_lshlrev_b32 {d}, 7, v3')
        A('v_bfe_u32 v3, v0, 3, 1'); A('v_bfe_u32 v4, v0, 4, 1'); A('v_lshl_or_b32 v3, v4, 1, v3'); A('v_lshlrev_b32 v3, 1, v3')
        A('v_bfe_u32 v4, v0, 1, 1'); A(f'v_add_u32 v4, {ct}, v4'); A('v_xor_b32 v3, v3, v4')
        A(f'v_lshl_add_u32 {d}, v3, 4, {d}'); A('v_and_b32 v3, 1, v0'); A(f'v_lshl_add_u32 {d}, v3, 3, {d}')
        A(f'v_add_u32 {d}, {base}, {d}')
    def tr_reads(dst, addr, nsteps, step, half, off0=0):
        for s in range(nsteps):
            A(f'ds_read_b64_tr_b16 v[{dst+4*s}:{dst+4*s+1}], {addr} offset:{off0+s*step}')
            A(f'ds_read_b64_tr_b16 v[{dst+4*s+2}:{dst+4*s+3}], {addr} offset:{off0+s*step+half}')
    def vec_reads(dst, addr, nsteps, off0=0):
        for s in range(nsteps): A(f'ds_read_b128 v[{dst+4*s}:{dst+4*s+3}], {addr} offset:{off0+s*64}')
    def mfma(d, a, b, first=False):
        A(f'v_mfma_f32_16x16x32_bf16 v[{d}:{d+3}], v[{a}:{a+3}], v[{b}:{b+3}], ' + ('0' if first else f'v[{d}:{d+3}]'))
    def layernorm(xr, nr):
        A('v_lshlrev_b32 v4, 2, v0'); A('v_add_u32 v4, v2, v4')
        for i in range(3): A(f'ds_read2st64_b32 v[{6+2*i}:{7+2*i}], v4 offset0:{XS//256+2*i} offset1:{XS//256+2*i+1}')
        A(f'ds_read_b32 v12, v4 offset:{XS+6*256}')
        A('s_waitcnt lgkmcnt(0)')
        A('v_readfirstlane_b32 s36, v6')
        for i in range(7): A(f'v_subrev_f32 v{6+i}, s36, v{6+i}')
        A('v_add_f32 v4, v6, v7'); A('v_mul_f32 v5, v6, v6')
        for i in range(1, 7):
            if i >= 2: A(f'v_add_f32 v4, v4, v{6+i}')
            A(f'v_fmac_f32 v5, v{6+i}, v{6+i}')
        wave_red('v_add_f32', ['v4', 'v5'], ['s37', 's38'])
        A('v_mov_b32 v6, 0x3b124925')
        A('v_mul_f32 v4, s37, v6'); A('v_mul_f32 v5, s38, v6')
        A('v_fma_f32 v5, -v4, v4, v5'); A('v_add_f32 v4, s36, v4')
        A('v_max_f32 v5, 0, v5')
        R('v5', 'v5'); R('v4', 'v4')
        A('v_add_f32 v5, 0x3727c5ac, v5'); R('v5', 'v5')
        A('v_sqrt_f32 v5, v5'); A(f'v_sub_f32 v4, {xr}, v4'); R('v5', 'v5'); R('v4', 'v4')
        A('v_rcp_f32 v5, v5'); A(f'v_mul_f32 {nr}, v4, v5'); R(nr, nr)
    def poll_head():
        l0 = lab('pl'); A(f's_mov_b32 s14, {TMO}'); A(f'{l0}:'); return l0
    def poll_tail(l0, sleep=0):
        l1 = lab('pd')
        A(f's_cbranch_vccz {l1}')
        if sleep: A(f's_sleep {sleep}')
        A('s_sub_u32 s14, s14, 1'); A(f's_cbranch_scc0 {l0}')
        A(f'{l1}:')
    def red4(r):
        A(f'v_permlane32_swap_b32 v{r}, v{r+2}'); A(f'v_permlane32_swap_b32 v{r+1}, v{r+3}')
        A(f'v_add_f32 v{r}, v{r}, v{r+2}'); A(f'v_add_f32 v{r+1}, v{r+1}, v{r+3}')
        A(f'v_permlane16_swap_b32 v{r}, v{r+1}'); A(f'v_add_f32 v{r}, v{r}, v{r+1}')

    A('s_cmp_ge_u32 s2, 256'); A('s_cbranch_scc1 L_end')
    A('s_load_dwordx16 s[64:79], s[0:1], 0'); A('s_load_dwordx8 s[80:87], s[0:1], 64'); A('s_load_dwordx2 s[8:9], s[0:1], 104')
    A('v_lshrrev_b32 v1, 6, v0'); A('s_and_b32 s5, s2, 7'); A('v_readfirstlane_b32 s4, v1')
    A('s_lshr_b32 s6, s2, 5'); A('s_bfe_u32 s7, s2, 0x20003')
    A('v_and_b32 v0, 63, v0'); A('s_mov_b32 s10, 0x20000000'); A('s_mov_b32 s11, 0x20000')
    A('v_lshlrev_b32 v1, 4, v0'); A(f'v_mov_b32 v2, {MISC}')
    A('s_lshl_b32 s40, s6, 3'); A('s_or_b32 s40, s40, s5')
    A('s_cmp_lt_u32 s40, 28'); A('s_cselect_b32 s41, 1, 0'); A('s_cmp_eq_u32 s7, 1'); A('s_cselect_b32 s41, s41, 0')
    if prof:
        A('v_mov_b32 v250, 0'); A('s_memrealtime s[62:63]'); A('s_waitcnt lgkmcnt(0)'); A('v_writelane_b32 v250, s62, 0')
    A('s_cmp_lg_u32 s4, 0'); A('s_cbranch_scc1 L_worker')

    tile128_voff('v6', 'v7', 512)
    A('v_lshlrev_b32 v5, 2, v0'); A('v_add_u32 v5, v2, v5')
    A(f'v_mov_b32 v8, {-(D-1)}')
    A('s_lshl_b32 s36, s5, 24'); A('s_lshl_b32 s37, s6, 18'); A('s_add_u32 s36, s36, s37'); A(f's_add_u32 s36, s36, {WIN0}')
    A('s_lshl_b32 s37, s7, 7'); A('s_add_u32 s37, s37, s36')
    A('s_mul_i32 s38, s7, 81920'); A('s_sub_u32 s38, s38, 65536'); A('s_cmp_eq_u32 s7, 0'); A('s_cselect_b32 s38, 0, s38'); A('s_cselect_b32 s39, 1, 5')
    A('s_add_u32 s36, s36, s38')
    A('s_waitcnt lgkmcnt(0)')
    srd(16, 66, 0x8000000); srd(20, 68, 0x8000000)
    A('s_barrier')
    A('s_cmp_lg_u32 s7, 0'); A('s_cbranch_scc1 L_ld_k')
    wait_flag(F_H, 7)
    A('L_ld_k:')
    stamp(1)
    A('s_mov_b32 m0, 0')
    A('L_ld_kloop:')
    for t in range(16):
        if t: A(f'v_xor_b32 v4, {t<<4}, v1')
        A(f"buffer_load_dwordx4 {'v4' if t else 'v1'}, s[16:19], s36 offen offset:{(t%4)*1024} nt lds")
        if t % 4 == 3: A('s_add_u32 m0, m0, 4096'); A('s_add_u32 s36, s36, 4096'); A('v_add_u32 v8, 4, v8')
        A(f's_waitcnt vmcnt({D-1})')
        if t % 4 == 3: A('ds_write_b32 v5, v8')
    A('s_sub_u32 s39, s39, 1'); A('s_cmp_lg_u32 s39, 0'); A('s_cbranch_scc1 L_ld_kloop')
    A('s_cmp_eq_u32 s41, 0'); A('s_cbranch_scc1 L_ld_v')
    wait_flag(F_AFREE, 4)
    A('L_ld_v:')
    stamp(2)
    def seg(name, srdr, regs, soff, step, n, m0=None):
        if m0 is not None: A(f's_mov_b32 m0, {m0}')
        A(f's_mov_b32 s39, {n}')
        A(f'{name}:')
        for k, r in enumerate(regs):
            A(f'buffer_load_dwordx4 {r}, s[{srdr}:{srdr+3}], {soff} offen nt lds')
            A('s_add_u32 m0, m0, 1024'); A(f's_add_u32 {soff}, {soff}, {step}')
            if k == len(regs) - 1: A(f'v_add_u32 v8, {len(regs)}, v8')
            A(f's_waitcnt vmcnt({D-1})')
        A('ds_write_b32 v5, v8')
        A('s_sub_u32 s39, s39, 1'); A('s_cmp_lg_u32 s39, 0'); A(f's_cbranch_scc1 {name}')
    seg('L_ld_vloop', 20, ['v6', 'v7'], 's37', 4096, 32, VREG)
    stamp(3)
    wait_flag(F_KFREE, 5)
    A('v_lshrrev_b32 v9, 2, v0'); A('v_bfe_u32 v3, v0, 5, 1'); A('v_lshlrev_b32 v3, 1, v3'); A('v_and_b32 v4, 3, v0'); A('v_xor_b32 v10, v3, v4')
    A('s_cmp_eq_u32 s7, 0'); A('s_cbranch_scc1 L_ld_ffn')
    A('s_cmp_eq_u32 s7, 1'); A('s_cbranch_scc1 L_ld_m')
    A('s_lshl_b32 s36, s7, 3'); A('s_add_u32 s36, s36, s6'); A('s_sub_u32 s36, s36, 16'); A('s_cmp_ge_u32 s36, 14'); A('s_cbranch_scc1 L_ld_drain')
    srd(24, 72, 4096*896)
    A('v_mul_u32_u24 v9, 896, v9'); A('v_lshl_add_u32 v9, v10, 4, v9')
    A('s_lshl_b32 s36, s36, 6'); A(f's_mul_i32 s37, s5, {512*896}'); A('s_add_u32 s36, s36, s37')
    seg('L_ld_wo', 24, ['v9', 'v9'], 's36', 16*896, 16, KREG)
    A('s_branch L_ld_drain')
    A('L_ld_m:')
    A('s_cmp_ge_u32 s40, 56'); A('s_cbranch_scc1 L_ld_drain')
    srd(24, 84, 448*5376)
    tile128_voff('v6', 'v7', 5376)
    A('s_and_b32 s36, s40, 1'); A(f's_mul_i32 s36, s36, {224*5376}'); A('s_lshr_b32 s37, s40, 1'); A('s_lshl_b32 s37, s37, 7'); A('s_add_u32 s36, s36, s37'); A(f's_add_u32 s36, s36, {14*128}')
    seg('L_ld_mm', 24, ['v6', 'v7'], 's36', 8*5376, 14, KREG)
    A('s_branch L_ld_drain')
    A('L_ld_ffn:')
    A('s_cmp_eq_u32 s5, 7'); A('s_cbranch_scc1 L_ld_drain')
    srd(24, 76, 448*3584); srd(28, 78, 448*3584); srd(32, 80, 1792*896)
    A('v_mul_u32_u24 v9, 3584, v9'); A('v_lshl_add_u32 v9, v10, 4, v9'); A('v_xor_b32 v11, 16, v9')
    A('s_lshl_b32 s42, s5, 3'); A('s_add_u32 s42, s42, s6')
    A('s_lshl_b32 s36, s42, 6')
    seg('L_ld_g', 24, ['v9', 'v9'], 's36', 16*3584, 14, KREG)
    A('s_lshl_b32 s36, s42, 6')
    seg('L_ld_u', 28, ['v11', 'v11'], 's36', 16*3584, 14)
    tile128_voff('v6', 'v7', 896)
    wait_flag(F_VFREE, 4)
    A(f's_mul_i32 s36, s42, {32*896}'); A(f's_mov_b32 m0, {VREG}'); A('s_mov_b32 s39, 7')
    A('L_ld_dn:')
    for k in range(4):
        A(f"buffer_load_dwordx4 {'v6' if k % 2 == 0 else 'v7'}, s[32:35], s36 offen nt lds")
        A('s_add_u32 m0, m0, 1024'); A(f's_add_u32 s36, s36, {8*896 if k < 3 else (128 - 24*896) & 0xffffffff}')
        if k == 3: A('v_add_u32 v8, 4, v8')
        A(f's_waitcnt vmcnt({D-1})')
    A('ds_write_b32 v5, v8')
    A('s_sub_u32 s39, s39, 1'); A('s_cmp_lg_u32 s39, 0'); A('s_cbranch_scc1 L_ld_dn')
    A('L_ld_drain:')
    stamp(4)
    prev = D - 1
    for k in [x for x in (40, 36, 32, 28, 24, 20, 16, 12, 8, 4, 0) if x < D - 1]:
        A(f'v_add_u32 v8, {prev-k}, v8'); A(f's_waitcnt vmcnt({k})'); A('ds_write_b32 v5, v8'); prev = k
    stamp(5)
    A('s_waitcnt lgkmcnt(0)')
    end()

    A('L_worker:')
    A('s_sub_u32 s13, s4, 1')
    A('s_cmp_lg_u32 s4, 7'); A('s_cbranch_scc1 L_w_nopf')
    A('s_getpc_b64 s[16:17]'); A('L_pc:'); A(f's_sub_u32 s16, s16, L_pc-{KN}'); A('s_subb_u32 s17, s17, 0'); A(f's_mov_b32 s18, L_codeend-{KN}'); A('s_mov_b32 s19, 0x20000')
    A('v_lshlrev_b32 v3, 7, v0'); A('s_mov_b32 s36, 8192')
    A('buffer_load_dword v249, v3, s[16:19], 0 offen'); A('buffer_load_dword v249, v3, s[16:19], s36 offen')
    A('L_w_nopf:')
    A('v_and_b32 v16, 15, v0'); A('v_lshrrev_b32 v17, 4, v0')
    for r in (20, 21, 22, 23): A(f'v_mov_b32 v{r}, {SENT}')
    A('s_cmp_lg_u32 s4, 1'); A('s_cbranch_scc1 L_w_nz')
    for r in (4, 5, 6, 7): A(f'v_mov_b32 v{r}, 0')
    A('v_add_u32 v3, v2, v1'); A('ds_write_b128 v3, v[4:7]')
    A('s_waitcnt lgkmcnt(0)')
    A('s_lshl_b32 s36, s5, 14'); A('s_lshr_b32 s37, s2, 3'); A('s_lshl_b32 s37, s37, 9'); A('s_add_u32 s36, s36, s37'); A(f's_add_u32 s36, s36, {MC}')
    A('s_mov_b32 exec_hi, 0'); A('buffer_store_dwordx4 v[20:23], v1, s[8:11], s36 offen sc1'); A('s_mov_b64 exec, -1')
    A('L_w_nz:')
    A('s_waitcnt lgkmcnt(0)')
    A('s_cmp_eq_u32 s7, 0'); A('s_cbranch_scc1 L_w_q0')
    A('s_cmp_eq_u32 s7, 1'); A('s_cbranch_scc1 L_w_c0')
    A('s_barrier'); A('s_load_dword s12, s[8:9], 0'); A('s_branch L_w_att')

    A('L_w_c0:')
    A('s_cmp_eq_u32 s41, 0'); A('s_cbranch_scc1 L_w_c1'); A('s_cmp_ge_u32 s13, 4'); A('s_cbranch_scc1 L_w_c1')
    A('s_lshl_b32 s36, s40, 2'); A('s_add_u32 s36, s36, s13'); A('s_lshl_b32 s36, s36, 11'); A(f's_add_u32 s36, s36, {MD}')
    A('buffer_store_dwordx4 v[20:23], v1, s[8:11], s36 offen sc1'); A('buffer_store_dwordx4 v[20:23], v1, s[8:11], s36 offen offset:1024 sc1')
    A('L_w_c1:')
    srd(20, 82, 896)
    A('s_lshl_b32 s36, s13, 7'); A('v_lshlrev_b32 v18, 1, v0')
    A('buffer_load_ushort v19, v18, s[20:23], s36 offen')
    A('s_cmp_eq_u32 s41, 0'); A('s_cbranch_scc1 L_w_c2')
    srd(16, 84, 448*5376)
    tile128_voff('v6', 'v7', 5376)
    A('s_and_b32 s37, s40, 1'); A(f's_mul_i32 s37, s37, {224*5376}'); A('s_lshr_b32 s38, s40, 1'); A('s_lshl_b32 s38, s38, 7'); A('s_add_u32 s37, s37, s38')
    A(f's_mul_i32 s38, s13, {32*5376}'); A('s_add_u32 s37, s37, s38')
    A('s_lshl_b32 s38, s13, 12'); A(f's_add_u32 m0, s38, {VREG}')
    for k in range(4):
        A(f"buffer_load_dwordx4 {'v6' if k % 2 == 0 else 'v7'}, s[16:19], s37 offen nt lds")
        if k < 3: A('s_add_u32 m0, m0, 1024'); A(f's_add_u32 s37, s37, {8*5376}')
    A('s_barrier'); A('s_load_dword s12, s[8:9], 0')
    A('s_waitcnt vmcnt(4)')
    A('s_branch L_w_c3')
    A('L_w_c2:')
    A('s_barrier'); A('s_load_dword s12, s[8:9], 0')
    A('s_waitcnt vmcnt(0)')
    A('L_w_c3:')
    A('v_lshlrev_b32 v19, 16, v19'); A(f'v_mul_f32 v4, {LOG2E ^ 0x80000000}, v19'); A('v_exp_f32 v4, v4'); A('v_add_f32 v4, 1.0, v4'); A('v_rcp_f32 v4, v4'); A('v_mul_f32 v4, v19, v4')
    A('v_cvt_pk_bf16_f32 v4, v4, v4'); A('v_add_u32 v18, s36, v18'); A('v_add_u32 v18, v2, v18'); A(f'ds_write_b16 v18, v4 offset:{HL}')
    A('s_waitcnt vmcnt(0)')
    flag_add(F_T)
    stamp(1)
    A('s_cmp_eq_u32 s41, 0'); A('s_cbranch_scc1 L_w_att'); A('s_cmp_ge_u32 s13, 4'); A('s_cbranch_scc1 L_w_att')
    A('s_lshl_b32 s36, s13, 1'); tr128_addr('v24', VREG, 's36')
    A('s_and_b32 s37, s40, 1'); A('s_mul_i32 s37, s37, 448'); A('v_lshl_add_u32 v25, v17, 4, v2'); A('v_add_u32 v25, s37, v25')
    wait_flag(F_T, 7, sleep=0)
    tr_reads(64, 'v24', 7, 4096, 512); vec_reads(128, 'v25', 7, HL)
    flag_add(F_AFREE)
    A('s_waitcnt lgkmcnt(0)')
    for s in range(7): mfma(28, 64+4*s, 128+4*s, s == 0)
    A(f's_add_u32 s12, s12, {PHI}')
    A('v_cmp_eq_u32 vcc, 0, v16'); A('v_lshlrev_b32 v4, 5, v17'); A('v_lshl_add_u32 v4, v16, 4, v4')
    A('s_lshl_b32 s36, s40, 9'); A('s_lshl_b32 s37, s13, 7'); A('s_add_u32 s36, s36, s37'); A(f's_add_u32 s36, s36, {MA}')
    A('v_mov_b32 v34, s12'); A('v_mov_b32 v35, s12')
    A('v_cndmask_b32 v32, v30, v28, vcc'); A('v_cndmask_b32 v33, v31, v29, vcc')
    A('s_mov_b32 exec_lo, 0x00030003'); A('s_mov_b32 exec_hi, 0x00030003')
    A('buffer_store_dwordx4 v[32:35], v4, s[8:11], s36 offen sc1')
    A('s_mov_b64 exec, -1')
    stamp(2)
    A('s_branch L_w_att2')

    A('L_w_q0:')
    srd(20, 64, 896)
    A('v_and_b32 v3, 31, v0'); A('v_lshrrev_b32 v4, 5, v0'); A('v_lshl_add_u32 v18, v3, 1, v4'); A('s_lshl_b32 s36, s13, 6'); A('v_add_u32 v18, s36, v18')
    A('v_lshlrev_b32 v26, 1, v18')
    A('buffer_load_ushort v19, v26, s[20:23], 0 offen')
    srd(16, 70, 448*8192)
    tile128_voff('v6', 'v7', 8192)
    A('s_lshl_b32 s37, s5, 10'); A('s_lshl_b32 s38, s6, 7'); A('s_add_u32 s37, s37, s38'); A('s_lshl_b32 s38, s13, 19'); A('s_add_u32 s37, s37, s38')
    A('s_lshl_b32 s38, s13, 13'); A(f's_add_u32 m0, s38, {WQ}')
    for k in range(8):
        A(f"buffer_load_dwordx4 {'v6' if k % 2 == 0 else 'v7'}, s[16:19], s37 offen nt lds")
        if k < 7: A('s_add_u32 m0, m0, 1024'); A(f's_add_u32 s37, s37, {8*8192}')
    A('s_barrier'); A('s_load_dword s12, s[8:9], 0')
    A('s_waitcnt vmcnt(8)')
    A('v_lshlrev_b32 v19, 16, v19'); A('v_lshl_add_u32 v3, v18, 2, v2'); A(f'ds_write_b32 v3, v19 offset:{XS}')
    flag_add(F_X)
    A('s_lshl_b32 s36, s13, 1'); tr128_addr('v24', WQ, 's36')
    wait_flag(F_X, 7)
    layernorm('v19', 'v27')
    A(f's_add_u32 s12, s12, {PHI}')
    A('s_waitcnt vmcnt(0)')
    flag_add(F_T)
    stamp(1)
    A('s_lshl_b32 s42, s13, 10'); A(f's_add_u32 s42, s42, {MA}'); A('s_add_u32 s43, s42, 7168')
    A('buffer_load_dwordx4 v[28:31], v1, s[8:11], s42 offen sc1'); A('buffer_load_dwordx4 v[32:35], v1, s[8:11], s43 offen sc1')
    A('s_cmp_ge_u32 s13, 4'); A('s_cbranch_scc1 L_w_q1')
    wait_flag(F_T, 7, sleep=0)
    tr_reads(64, 'v24', 14, 4096, 512)
    flag_add(F_KFREE)
    A('L_w_q1:')
    A(f's_mov_b32 s14, {TMO}'); A('s_branch L_w_q3')
    A('L_w_q2:')
    A('buffer_load_dwordx4 v[28:31], v1, s[8:11], s42 offen sc1'); A('buffer_load_dwordx4 v[32:35], v1, s[8:11], s43 offen sc1')
    A('L_w_q3:')
    A('s_waitcnt vmcnt(0)')
    A('v_xor_b32 v3, s12, v30'); A('v_xor_b32 v4, s12, v34'); A('v_or_b32 v3, v3, v4'); A('v_cmp_ne_u32 vcc, 0, v3')
    poll_tail('L_w_q2')
    stamp(2)
    A('v_permlane32_swap_b32 v28, v29'); A('v_permlane32_swap_b32 v32, v33'); A('v_add_f32 v28, v28, v29'); A('v_add_f32 v32, v32, v33')
    R('v32', 'v32'); R('v28', 'v28'); A('v_add_f32 v32, 1.0, v32'); R('v32', 'v32'); A('v_mul_f32 v32, v27, v32'); R('v32', 'v32'); A('v_add_f32 v32, v32, v28')
    A('v_cvt_pk_bf16_f32 v32, v32, v32'); A('v_add_u32 v3, v2, v26'); A(f'ds_write_b16 v3, v32 offset:{HL}')
    flag_add(F_H)
    A('s_cmp_ge_u32 s13, 4'); A('s_cbranch_scc1 L_w_att2')
    A('v_lshl_add_u32 v25, v17, 4, v2')
    wait_flag(F_H, 7, sleep=0)
    vec_reads(128, 'v25', 14, HL)
    for s in range(14):
        A(f's_waitcnt lgkmcnt({13-s})'); mfma(28, 64+4*s, 128+4*s, s == 0)
    A('s_and_b32 s36, s12, 0xffff'); A('v_mov_b32 v3, s36'); A('s_mov_b32 s37, 0xffff0000'); A('v_lshlrev_b32 v4, 4, v17')
    A('s_lshl_b32 s36, s5, 12'); A('s_lshl_b32 s38, s6, 9'); A('s_add_u32 s36, s36, s38'); A('s_lshl_b32 s38, s13, 7'); A('s_add_u32 s36, s36, s38'); A(f's_add_u32 s36, s36, {MB}')
    A('v_cvt_pk_bf16_f32 v29, v28, v29'); A('v_cvt_pk_bf16_f32 v31, v30, v31')
    A('v_lshl_or_b32 v28, v29, 16, v3'); A('v_and_or_b32 v29, v29, s37, v3'); A('v_lshl_or_b32 v30, v31, 16, v3'); A('v_and_or_b32 v31, v31, s37, v3')
    A('s_mov_b32 exec_lo, 0x00010001'); A('s_mov_b32 exec_hi, 0x00010001')
    A('buffer_store_dwordx4 v[28:31], v4, s[8:11], s36 offen sc1')
    A('s_mov_b64 exec, -1')
    stamp(3)
    A('s_branch L_w_att2')

    A('L_w_att:')
    A('s_waitcnt lgkmcnt(0)'); A(f's_add_u32 s12, s12, {PHI}')
    A('L_w_att2:')
    A('s_cmp_eq_u32 s4, 6'); A('s_cbranch_scc1 L_w_qg')
    A('s_cmp_eq_u32 s4, 7'); A('s_cbranch_scc1 L_w_st')
    A('s_cmp_eq_u32 s7, 0'); A('s_cselect_b32 s36, 1, 5'); A('s_cmp_ge_u32 s13, s36'); A('s_cbranch_scc1 L_w_x')
    A('v_lshlrev_b32 v3, 10, v16'); A('s_lshl_b32 s36, s13, 14'); A('v_add_u32 v3, s36, v3')
    for a in range(4):
        A(f'v_add_u32 v4, {4*a}, v17'); A('v_xor_b32 v4, v4, v16'); A(f'v_lshl_add_u32 v{24+a}, v4, 4, v3')
    A('v_and_b32 v3, 1, v0'); A('v_lshlrev_b32 v3, 9, v3'); A('v_lshl_add_u32 v3, v17, 4, v3'); A('v_add_u32 v18, v2, v3')
    A('s_lshl_b32 s36, s4, 4')
    wait_flag(F_PROG, 's36')
    stamp(4)
    for tau in range(2):
        for s in range(8): A(f'ds_read_b128 v[{64+32*tau+4*s}:{67+32*tau+4*s}], v{24+(s&3)} offset:{tau*512 + (s>>2)*256}')
    flag_add(F_KFREE)
    A('s_mul_i32 s36, s7, 5'); A('s_add_u32 s36, s36, s13'); A('s_sub_u32 s36, s36, 4'); A('s_cmp_eq_u32 s7, 0'); A('s_cselect_b32 s36, 0, s36')
    A('s_lshl_b32 s37, s6, 4'); A('s_add_u32 s36, s36, s37'); A('s_lshl_b32 s37, s5, 7'); A('s_add_u32 s36, s36, s37')
    A('s_lshl_b32 s42, s36, 8'); A(f's_add_u32 s42, s42, {MS}'); A('s_lshl_b32 s43, s36, 7'); A(f's_add_u32 s43, s43, {MZ}')
    A('s_getreg_b32 s44, hwreg(HW_REG_XCC_ID, 0, 4)'); A('s_andn2_b32 s45, s12, 15'); A('s_or_b32 s45, s45, s44')
    wait_flag(F_Q, 1, sleep=0)
    stamp(5)
    vec_reads(128, 'v18', 8, QL)
    for s in range(8):
        A(f's_waitcnt lgkmcnt({7-s})'); mfma(28, 128+4*s, 64+4*s, s == 0); mfma(32, 128+4*s, 96+4*s, s == 0)
    A('v_and_b32 v3, 1, v17'); A('v_cmp_eq_u32 vcc, 1, v3'); A('v_mov_b32 v37, s12'); A('v_mov_b32 v39, s12')
    A('v_cvt_pk_bf16_f32 v36, v28, v29'); A('v_cvt_pk_bf16_f32 v38, v32, v33')
    A('s_waitcnt vmcnt(0)')
    A('s_mov_b64 exec, 0xffff'); A('buffer_store_dwordx4 v[36:39], v1, s[8:11], s42 offen sc1'); A('s_mov_b64 exec, -1')
    A('v_cndmask_b32 v28, v28, v29, vcc'); A('v_cndmask_b32 v32, v32, v33, vcc'); R('v28', 'v28'); R('v32', 'v32')
    A('v_max_f32 v4, v28, v32')
    for k in (1, 2, 4, 8): dpp('v_max_f32', 'v4', 'v4', 'v4', ROR(k))
    A('v_sub_f32 v28, v28, v4'); A('v_sub_f32 v32, v32, v4'); A(f'v_mul_f32 v28, {C2}, v28'); A(f'v_mul_f32 v32, {C2}, v32'); A('v_exp_f32 v28, v28'); A('v_exp_f32 v32, v32')
    A('v_add_f32 v5, v28, v32')
    for k in (1, 2, 4, 8): dpp('v_add_f32', 'v5', 'v5', 'v5', ROR(k))
    A('v_readlane_b32 s36, v4, 16'); A('v_readlane_b32 s37, v5, 16')
    A('v_lshrrev_b32 v4, 16, v4'); A('v_or_b32 v4, s36, v4'); A('v_mov_b32 v6, s37'); A('v_mov_b32 v7, s45')
    A('s_mov_b64 exec, 1'); A('buffer_store_dwordx4 v[4:7], v1, s[8:11], s43 offen sc1'); A('s_mov_b64 exec, -1')
    stamp(6)
    A('L_w_x:')
    A('s_cmp_ge_u32 s13, 4'); A('s_cbranch_scc1 L_w_tail5')
    A('s_lshl_b32 s42, s5, 15'); A('s_lshl_b32 s36, s6, 12'); A('s_add_u32 s42, s42, s36'); A('s_lshl_b32 s36, s13, 10'); A('s_add_u32 s42, s42, s36'); A(f's_add_u32 s42, s42, {MS}')
    A('s_lshl_b32 s36, s13, 1'); tr128_addr('v24', VREG, 's36')
    A('v_and_b32 v3, 1, v0'); A('v_lshlrev_b32 v3, 10, v3'); A('v_lshl_add_u32 v3, v17, 4, v3'); A('v_add_u32 v25, v2, v3')
    A('s_lshl_b32 s36, s13, 8'); A('v_lshl_add_u32 v26, v0, 2, v2'); A('v_add_u32 v26, s36, v26')
    l0 = poll_head()
    A('buffer_load_dwordx4 v[28:31], v1, s[8:11], s42 offen sc1'); A('s_waitcnt vmcnt(0)'); A('v_cmp_ne_u32 vcc, s12, v29')
    poll_tail(l0)
    stamp(7)
    A('v_lshlrev_b32 v32, 16, v28'); A('v_lshlrev_b32 v33, 16, v30'); A('v_and_b32 v34, 0xffff0000, v28'); A('v_and_b32 v35, 0xffff0000, v30')
    wait_flag(F_ML, 1, sleep=0)
    A(f'ds_read_b128 v[36:39], v2 offset:{ML}'); A(f'ds_read_b32 v40, v2 offset:{ML+16}'); A('s_waitcnt lgkmcnt(0)')
    for k in range(4): A(f'v_sub_f32 v{32+k}, v{32+k}, v{36+(k>>1)}')
    for k in range(4): A(f'v_mul_f32 v{32+k}, {C2}, v{32+k}')
    for k in range(4): A(f'v_exp_f32 v{32+k}, v{32+k}')
    A('v_readfirstlane_b32 s46, v40')
    for k in range(4): A(f'v_mul_f32 v{32+k}, v{32+k}, v{38+(k>>1)}')
    A('v_cvt_pk_bf16_f32 v32, v32, v33'); A('v_cvt_pk_bf16_f32 v34, v34, v35')
    A(f'ds_write_b32 v26, v32 offset:{PL}'); A(f'ds_write_b32 v26, v34 offset:{PL+1024}')
    flag_add(F_P)
    A('s_cmp_eq_u32 s7, 0'); A('s_cselect_b32 s47, 16, 80')
    A('s_lshl_b32 s42, s5, 14'); A('s_lshr_b32 s36, s2, 3'); A('s_lshl_b32 s36, s36, 9'); A('s_add_u32 s42, s42, s36'); A('s_lshl_b32 s36, s13, 7'); A('s_add_u32 s42, s42, s36'); A(f's_add_u32 s42, s42, {MC}')
    A('v_lshlrev_b32 v27, 4, v17'); A('v_lshl_add_u32 v27, v16, 6, v27')
    wait_flag(F_P, 4, sleep=0)
    stamp(8)
    vec_reads(64, 'v25', 16, PL)
    A('s_mov_b32 s15, -1')
    groups = [(0, 4), (4, 4), (8, 4), (12, 2), (14, 1), (15, 1)]
    for (s0, ns) in groups:
        lk = lab('pv')
        A(f's_add_u32 s36, s47, {4*(s0+ns)}'); A('s_cmp_ge_i32 s15, s36'); A(f's_cbranch_scc1 {lk}')
        wait_flag(F_PROG, 's36', sleep=0, keep='s15')
        A(f'{lk}:')
        if s0 + ns == 16: stamp(9)
        tr_reads(128, 'v24', ns, 4096, 512, s0*4096)
        for s in range(ns):
            A(f's_waitcnt lgkmcnt({2*(ns-1-s)})'); mfma(28, 128+4*s, 64+4*(s0+s), s0 + s == 0)
    flag_add(F_VFREE)
    A('s_mov_b32 exec_lo, 0x00030003'); A('s_mov_b32 exec_hi, 0x00030003')
    A('s_cmp_eq_u32 s46, 0'); A('s_cbranch_scc1 L_w_pv1')
    A('s_nop 4'); A('buffer_store_dwordx4 v[28:31], v27, s[8:11], s42 offen' + ('' if samexcd else ' sc1')); A('s_branch L_w_pv2')
    A('L_w_pv1:'); A('s_nop 4'); A('buffer_store_dwordx4 v[28:31], v27, s[8:11], s42 offen sc1')
    A('L_w_pv2:')
    A('s_mov_b64 exec, -1')
    stamp(10)
    A('s_cmp_eq_u32 s7, 0'); A('s_cbranch_scc1 L_w_ffn')
    A('s_cmp_eq_u32 s7, 1'); A('s_cbranch_scc1 L_w_m')
    A('s_lshl_b32 s43, s7, 3'); A('s_add_u32 s43, s43, s6'); A('s_sub_u32 s43, s43, 16'); A('s_cmp_ge_u32 s43, 14'); A('s_cbranch_scc1 L_w_end')
    A('v_lshrrev_b32 v3, 2, v16'); A('v_lshl_add_u32 v3, v17, 3, v3'); A('v_lshlrev_b32 v24, 6, v3'); A('v_bfe_u32 v3, v0, 4, 1'); A('v_lshlrev_b32 v3, 1, v3'); A('v_bfe_u32 v4, v0, 1, 1'); A('v_xor_b32 v3, v3, v4')
    A('v_lshl_add_u32 v24, v3, 4, v24'); A('v_and_b32 v3, 1, v0'); A('v_lshl_add_u32 v24, v3, 3, v24'); A('s_lshl_b32 s36, s13, 12'); A('v_add_u32 v24, s36, v24'); A('v_xor_b32 v25, 32, v24')
    A('v_and_b32 v3, 31, v0'); A('v_lshlrev_b32 v3, 4, v3'); A('v_lshrrev_b32 v4, 5, v0'); A('v_lshl_add_u32 v26, v4, 11, v3')
    A('s_lshl_b32 s42, s5, 14'); A('s_lshl_b32 s36, s13, 9'); A('s_add_u32 s42, s42, s36'); A(f's_add_u32 s42, s42, {MC}')
    A('s_add_u32 s48, s42, 4096'); A('s_add_u32 s49, s42, 8192'); A('s_add_u32 s50, s42, 12288')
    A('v_bfe_u32 v3, v0, 2, 1'); A('v_lshlrev_b32 v3, 7, v3'); A('v_lshl_add_u32 v3, v4, 2, v3'); A('v_bfe_u32 v4, v0, 3, 2'); A('v_lshl_add_u32 v3, v4, 5, v3'); A('v_and_b32 v4, 3, v0'); A('v_lshl_add_u32 v3, v4, 3, v3')
    A('s_lshl_b32 s36, s13, 8'); A(f's_add_u32 s36, s36, {MISC+OL}'); A('v_add_u32 v27, s36, v3')
    A('v_lshlrev_b32 v3, 4, v17'); A('v_add_u32 v3, s36, v3'); A(f'v_mov_b32 v4, {MISC+ZERO}')
    A('v_cmp_eq_u32 vcc, 0, v16'); A('v_cndmask_b32 v18, v4, v3, vcc'); A('v_cmp_eq_u32 vcc, 1, v16'); A('v_cndmask_b32 v19, v4, v3, vcc')
    A('s_lshl_b32 s36, s13, 7'); A('v_lshlrev_b32 v3, 4, v17'); A('v_lshl_add_u32 v3, v16, 6, v3'); A('v_add3_u32 v44, v3, s36, v2')
    wait_flag(F_PROG, 80 + 64 + 32, sleep=0)
    for ct, ad in enumerate(('v24', 'v25')):
        for h in range(2): tr_reads(64 + 16*ct + 8*h, ad, 2, 2048, 256, h*16384)
    stamp(11)
    l0 = poll_head()
    for a, so in enumerate(('s42', 's48', 's49', 's50')): A(f'buffer_load_dwordx4 v[{28+4*a}:{31+4*a}], v26, s[8:11], {so} offen sc1')
    A('s_waitcnt vmcnt(2)')
    for r in range(4): A(f'v_add_f32 v{28+r}, v{28+r}, v{32+r}')
    A('s_waitcnt vmcnt(0)')
    for r in range(4): A(f'v_add_f32 v{36+r}, v{36+r}, v{40+r}')
    for r in range(4): A(f'v_add_f32 v{28+r}, v{28+r}, v{36+r}')
    A('v_permlane32_swap_b32 v28, v30'); A('v_permlane32_swap_b32 v29, v31'); A('v_add_f32 v28, v28, v30'); A('v_add_f32 v29, v29, v31')
    A('v_add_f32 v3, v28, v29'); A('v_cmp_eq_u32 vcc, v20, v3')
    poll_tail(l0)
    stamp(12)
    A('v_cvt_pk_bf16_f32 v28, v28, v29'); A('ds_write_b32 v27, v28')
    vec_reads(128, 'v18', 4); vec_reads(144, 'v19', 4)
    for k in range(8):
        A(f's_waitcnt lgkmcnt({7-k})'); mfma(28, 64+4*k, 128+4*k, k == 0)
    A('s_lshl_b32 s36, s5, 0'); A('s_mul_i32 s36, s36, 1792'); A('s_lshl_b32 s37, s43, 7'); A('s_add_u32 s36, s36, s37'); A(f's_add_u32 s36, s36, {MD}')
    A('v_and_b32 v3, 7, v0'); A('v_lshl_add_u32 v4, v3, 4, v2'); A('v_lshrrev_b32 v5, 3, v0'); A('v_mul_u32_u24 v5, 14336, v5'); A('v_lshl_add_u32 v5, v3, 4, v5')
    A('s_mov_b32 exec_lo, 0x00030003'); A('s_mov_b32 exec_hi, 0x00030003')
    A(f'ds_write_b128 v44, v[28:31] offset:{STG}')
    A('s_mov_b64 exec, -1')
    A('s_waitcnt lgkmcnt(0)'); A('s_barrier')
    A('s_cmp_lg_u32 s4, 1'); A('s_cbranch_scc1 L_w_end')
    for a in range(4): A(f'ds_read_b128 v[{28+4*a}:{31+4*a}], v4 offset:{STG+128*a}')
    A('s_waitcnt lgkmcnt(2)')
    for r in range(4): A(f'v_add_f32 v{28+r}, v{28+r}, v{32+r}')
    A('s_waitcnt lgkmcnt(0)')
    for r in range(4): A(f'v_add_f32 v{36+r}, v{36+r}, v{40+r}')
    for r in range(4): A(f'v_add_f32 v{28+r}, v{28+r}, v{36+r}')
    A('buffer_store_dwordx4 v[28:31], v5, s[8:11], s36 offen sc1')
    stamp(13)
    end()

    A('L_w_m:')
    A('s_cmp_ge_u32 s40, 56'); A('s_cbranch_scc1 L_w_end')
    A('s_lshl_b32 s36, s13, 1'); tr128_addr('v24', KREG, 's36')
    A('s_and_b32 s37, s40, 1'); A('s_mul_i32 s38, s37, 448'); A('v_lshl_add_u32 v25, v17, 4, v2'); A('v_add_u32 v25, s38, v25')
    A('s_lshr_b32 s38, s40, 1'); A('s_mul_i32 s39, s38, 37'); A('s_lshr_b32 s39, s39, 8'); A('s_mul_i32 s42, s39, 7'); A('s_sub_u32 s38, s38, s42')
    A('s_mul_i32 s39, s39, 3584'); A('s_mul_i32 s37, s37, 1792'); A('s_lshl_b32 s38, s38, 8'); A('s_add_u32 s42, s39, s37'); A('s_add_u32 s42, s42, s38'); A('s_lshl_b32 s38, s13, 6'); A('s_add_u32 s42, s42, s38'); A(f's_add_u32 s42, s42, {MM}')
    A('v_lshlrev_b32 v4, 4, v17')
    wait_flag(F_T, 7)
    vec_reads(128, 'v25', 7, HL)
    wait_flag(F_PROG, 80 + 64 + 28, sleep=0)
    tr_reads(64, 'v24', 7, 4096, 512)
    A('s_waitcnt lgkmcnt(0)')
    for s in range(7): mfma(28, 64+4*s, 128+4*s, s == 0)
    A('s_mov_b32 exec_lo, 0x00010001'); A('s_mov_b32 exec_hi, 0x00010001')
    A('buffer_store_dwordx4 v[28:31], v4, s[8:11], s42 offen sc1')
    stamp(11)
    end()

    A('L_w_qg:')
    A('v_lshrrev_b32 v3, 2, v0'); A('v_and_b32 v4, 3, v0'); A('v_lshlrev_b32 v4, 4, v4'); A('v_lshl_add_u32 v24, v3, 7, v4')
    A('s_lshl_b32 s42, s5, 12'); A(f's_add_u32 s42, s42, {MB}'); A('s_and_b32 s36, s12, 0xffff'); A('s_lshl_b32 s37, s36, 16'); A('s_or_b32 s37, s37, s36')
    A('s_mov_b32 s38, 0x05040100'); A('s_mov_b32 s39, 0x07060302'); A('v_lshl_add_u32 v25, v0, 3, v2')
    l0 = poll_head()
    A('buffer_load_dwordx4 v[28:31], v24, s[8:11], s42 offen sc1'); A('buffer_load_dwordx4 v[32:35], v24, s[8:11], s42 offen offset:2048 sc1')
    A('s_waitcnt vmcnt(0)')
    for k in range(4): A(f'v_perm_b32 v{36+k}, v{29+2*k}, v{28+2*k}, s38')
    for k in range(4): A(f'v_xor_b32 v{36+k}, s37, v{36+k}')
    A('v_or3_b32 v36, v36, v37, v38'); A('v_or_b32 v36, v36, v39'); A('v_cmp_ne_u32 vcc, 0, v36')
    poll_tail(l0)
    for k in range(4): A(f'v_perm_b32 v{36+k}, v{29+2*k}, v{28+2*k}, s39')
    A(f'ds_write_b64 v25, v[36:37] offset:{QL}'); A(f'ds_write_b64 v25, v[38:39] offset:{QL+512}')
    flag_add(F_Q)
    stamp(4)
    A('s_branch L_w_tail5')

    A('L_w_st:')
    A('v_lshlrev_b32 v24, 7, v0'); A('s_lshl_b32 s42, s5, 14'); A(f's_add_u32 s42, s42, {MZ}'); A('s_add_u32 s43, s42, 8192')
    A('s_getreg_b32 s44, hwreg(HW_REG_XCC_ID, 0, 4)'); A('s_andn2_b32 s45, s12, 15'); A('s_or_b32 s45, s45, s44')
    wait_flag(F_Q, 1, sleep=2)
    l0 = poll_head()
    A('buffer_load_dwordx4 v[28:31], v24, s[8:11], s42 offen sc1'); A('buffer_load_dwordx4 v[32:35], v24, s[8:11], s43 offen sc1')
    A('s_waitcnt vmcnt(0)')
    A('v_xor_b32 v3, s45, v31'); A('v_xor_b32 v4, s45, v35'); A('v_or_b32 v3, v3, v4'); A('v_cmp_lt_u32 vcc, 15, v3')
    poll_tail(l0)
    stamp(5)
    A('v_cmp_ne_u32 vcc, 0, v3')
    A('v_lshlrev_b32 v36, 16, v28'); A('v_and_b32 v37, 0xffff0000, v28'); A('v_lshlrev_b32 v38, 16, v32'); A('v_and_b32 v39, 0xffff0000, v32')
    A('s_cmp_eq_u64 vcc, 0'); A('s_cselect_b32 s46, 1, 0')
    A('v_max_f32 v4, v36, v38'); A('v_max_f32 v5, v37, v39')
    wave_red('v_max_f32', ['v4', 'v5'], ['s36', 's37'])
    for k in range(4): A(f"v_subrev_f32 v{36+k}, s{36+(k&1)}, v{36+k}")
    for k in range(4): A(f'v_mul_f32 v{36+k}, {C2}, v{36+k}')
    for k in range(4): A(f'v_exp_f32 v{36+k}, v{36+k}')
    A('v_mul_f32 v4, v36, v29'); A('v_mul_f32 v5, v37, v30'); A('v_fmac_f32 v4, v38, v33'); A('v_fmac_f32 v5, v39, v34')
    wave_red('v_add_f32', ['v4', 'v5'], ['s38', 's39'])
    A('v_mov_b32 v4, s36'); A('v_mov_b32 v5, s37'); A('v_rcp_f32 v6, s38'); A('v_rcp_f32 v7, s39'); A('v_mov_b32 v8, s46')
    A('s_mov_b64 exec, 1'); A(f'ds_write_b128 v2, v[4:7] offset:{ML}'); A(f'ds_write_b32 v2, v8 offset:{ML+16}'); A('s_mov_b64 exec, -1')
    flag_add(F_ML)
    stamp(6)
    A('L_w_tail5:')
    A('s_cmp_eq_u32 s7, 0'); A('s_cbranch_scc1 L_w_ffn')
    A('s_cmp_lg_u32 s4, 5'); A('s_cbranch_scc1 L_w_end')
    A('s_cmp_lg_u32 s7, 3'); A('s_cbranch_scc1 L_w_end')
    A('s_sub_u32 s43, s40, 48'); A('s_cmp_ge_u32 s43, 14'); A('s_cbranch_scc1 L_w_end')
    srd(20, 64, 896); srd(24, 86, 896)
    A('v_and_b32 v3, 7, v0'); A('v_lshl_add_u32 v18, v3, 2, v17'); A('s_lshl_b32 s36, s43, 5'); A('v_add_u32 v18, s36, v18')
    A('v_lshlrev_b32 v26, 1, v18'); A('v_lshlrev_b32 v27, 2, v18')
    A('buffer_load_ushort v19, v26, s[20:23], 0 offen')
    A('v_lshrrev_b32 v4, 3, v0'); A('v_mul_u32_u24 v24, 1792, v4'); A('v_lshl_add_u32 v24, v3, 4, v24')
    A('s_mul_i32 s44, s5, 14336'); A('s_lshl_b32 s36, s43, 7'); A('s_add_u32 s44, s44, s36'); A(f's_add_u32 s44, s44, {MD}')
    A('s_mul_i32 s45, s43, 7168'); A(f's_add_u32 s45, s45, {MF}'); A('s_add_u32 s46, s45, 4096')
    A(f's_mov_b32 s36, {MM}'); A(f's_mov_b32 s37, {MM+3*3584}')
    l0 = poll_head()
    A('buffer_load_dword v28, v27, s[8:11], s36 offen sc1'); A('buffer_load_dword v29, v27, s[8:11], s36 offen offset:1792 sc1')
    A('buffer_load_dword v30, v27, s[8:11], s37 offen sc1'); A('buffer_load_dword v31, v27, s[8:11], s37 offen offset:1792 sc1')
    A('s_waitcnt vmcnt(0)')
    A('v_add_f32 v40, v28, v29'); A('v_add_f32 v41, v30, v31'); A('v_add_f32 v3, v40, v41'); A('v_cmp_eq_u32 vcc, v20, v3')
    poll_tail(l0, sleep=4)
    R('v40', 'v40'); R('v41', 'v41'); A('v_lshlrev_b32 v19, 16, v19')
    stamp(7)
    l0 = poll_head()
    A('buffer_load_dwordx4 v[28:31], v24, s[8:11], s44 offen sc1'); A('s_waitcnt vmcnt(0)')
    red4(28); dpp('v_add_f32', 'v28', 'v28', 'v28', ROR(8)); A('v_cmp_eq_u32 vcc, v20, v28')
    poll_tail(l0, sleep=1)
    R('v28', 'v28'); A('v_mul_f32 v28, v40, v28'); R('v28', 'v28'); A('v_add_f32 v19, v19, v28'); R('v19', 'v19')
    stamp(8)
    l0 = poll_head()
    for a in range(7): A(f"buffer_load_dwordx4 v[{64+4*a}:{67+4*a}], v1, s[8:11], {'s45' if a < 4 else 's46'} offen offset:{(a&3)*1024} sc1")
    for a in range(1, 7):
        A(f's_waitcnt vmcnt({6-a})')
        for r in range(4): A(f'v_add_f32 v{64+r}, v{64+r}, v{64+4*a+r}')
    red4(64); dpp('v_add_f32', 'v64', 'v64', 'v64', ROR(8)); A('v_cmp_eq_u32 vcc, v20, v64')
    poll_tail(l0)
    R('v64', 'v64'); A('v_mul_f32 v64, v41, v64'); R('v64', 'v64'); A('v_add_f32 v19, v19, v64'); A('v_cvt_pk_bf16_f32 v19, v19, v19')
    A('s_mov_b32 exec_lo, 0x00ff00ff'); A('s_mov_b32 exec_hi, 0x00ff00ff')
    A('buffer_store_short v19, v26, s[24:27], 0 offen')
    A('s_mov_b64 exec, 1'); A('s_cmp_lg_u32 s43, 0'); A('s_cbranch_scc1 L_w_f1')
    A('v_mov_b32 v3, s12'); A('buffer_store_dword v3, v1, s[8:11], 0 offen sc1')
    A('L_w_f1:')
    A('s_mov_b64 exec, -1')
    stamp(9)
    end()

    A('L_w_ffn:')
    A('s_cmp_eq_u32 s5, 7'); A('s_cbranch_scc1 L_w_end')
    srd(20, 64, 896)
    A('v_lshl_add_u32 v18, v16, 2, v17'); A('s_lshl_b32 s36, s13, 6'); A('v_add_u32 v18, s36, v18')
    A('v_lshlrev_b32 v26, 1, v18'); A('v_lshlrev_b32 v27, 2, v18')
    A('buffer_load_ushort v19, v26, s[20:23], 0 offen')
    A('v_mul_u32_u24 v24, 1792, v17'); A('v_lshl_add_u32 v24, v16, 4, v24')
    A('s_mul_i32 s44, s5, 14336'); A('s_lshl_b32 s36, s13, 8'); A('s_add_u32 s44, s44, s36'); A(f's_add_u32 s44, s44, {MD}'); A('s_add_u32 s45, s44, 7168')
    A(f's_mov_b32 s36, {MM}'); A(f's_mov_b32 s37, {MM+3584}'); A(f's_mov_b32 s38, {MM+2*3584}')
    A('v_lshrrev_b32 v3, 2, v16'); A('v_lshl_add_u32 v3, v17, 3, v3'); A('v_lshlrev_b32 v44, 6, v3'); A('v_bfe_u32 v3, v0, 4, 1'); A('v_bfe_u32 v4, v0, 1, 1'); A('v_lshl_or_b32 v3, v3, 1, v4'); A('v_xor_b32 v3, s13, v3')
    A('v_lshl_add_u32 v44, v3, 4, v44'); A('v_and_b32 v3, 1, v0'); A('v_lshl_add_u32 v44, v3, 3, v44'); A('v_mul_u32_u24 v4, 28672, v4'); A('v_add_u32 v44, v44, v4')
    A('s_lshl_b32 s39, s13, 12'); A(f's_add_u32 s39, s39, {VREG}'); A('s_mov_b32 s48, 0'); tr128_addr('v45', 's39', 's48')
    for t in range(1, 4): A(f'v_xor_b32 v{45+t}, {32*t}, v45')
    A('v_lshl_add_u32 v25, v17, 4, v2'); A(f'v_add_u32 v3, {ACT}, v25'); A(f'v_mov_b32 v4, {MISC+ZERO}')
    for t in range(4): A(f'v_cmp_eq_u32 vcc, {t}, v16'); A(f'v_cndmask_b32 v{50+t}, v4, v3, vcc')
    A('v_lshrrev_b32 v3, 1, v16'); A('v_mul_u32_u24 v54, 7168, v3'); A('v_and_b32 v3, 1, v0'); A('v_lshl_add_u32 v54, v3, 6, v54'); A('v_lshl_add_u32 v54, v17, 4, v54')
    A('s_lshl_b32 s49, s5, 3'); A('s_add_u32 s49, s49, s6'); A('s_lshl_b32 s49, s49, 7'); A('s_mul_i32 s39, s13, 14336'); A('s_add_u32 s49, s49, s39'); A(f's_add_u32 s49, s49, {MF}')
    l0 = poll_head()
    for k in range(3):
        A(f'buffer_load_dword v{28+2*k}, v27, s[8:11], s{36+k} offen sc1'); A(f'buffer_load_dword v{29+2*k}, v27, s[8:11], s{36+k} offen offset:1792 sc1')
    A('s_waitcnt vmcnt(0)')
    for k in range(3): A(f'v_add_f32 v{40+k}, v{28+2*k}, v{29+2*k}')
    A('v_add_f32 v3, v40, v41'); A('v_add_f32 v3, v3, v42'); A('v_cmp_eq_u32 vcc, v20, v3')
    poll_tail(l0, sleep=4)
    R('v40', 'v40'); R('v41', 'v41'); R('v42', 'v42'); A('v_add_f32 v42, 1.0, v42'); R('v42', 'v42'); A('v_lshlrev_b32 v19, 16, v19')
    stamp(11)
    A('s_cmp_ge_u32 s13, 4'); A('s_cbranch_scc1 L_w_f2')
    wait_flag(F_PROG, 16 + 64 + 56)
    tr_reads(64, 'v44', 14, 2048, 256)
    A('L_w_f2:')
    wait_flag(F_PROG, 16 + 64 + 84)
    for t in range(4): tr_reads(184 + 4*t, f'v{45+t}', 1, 0, 512)
    stamp(12)
    l0 = poll_head()
    A('buffer_load_dwordx4 v[28:31], v24, s[8:11], s44 offen sc1'); A('buffer_load_dwordx4 v[32:35], v24, s[8:11], s45 offen sc1')
    A('s_waitcnt vmcnt(0)')
    for r in range(4): A(f'v_add_f32 v{28+r}, v{28+r}, v{32+r}')
    red4(28); A('v_cmp_eq_u32 vcc, v20, v28')
    poll_tail(l0)
    stamp(13)
    R('v28', 'v28'); A('v_mul_f32 v28, v40, v28'); R('v28', 'v28'); A('v_add_f32 v19, v19, v28'); R('v19', 'v19')
    A('v_add_u32 v3, v2, v27'); A(f'ds_write_b32 v3, v19 offset:{XS}')
    A('s_waitcnt lgkmcnt(0)'); A('s_barrier')
    layernorm('v19', 'v28')
    A('v_mul_f32 v28, v28, v42'); R('v28', 'v28'); A('v_add_f32 v28, v28, v41'); A('v_cvt_pk_bf16_f32 v28, v28, v28')
    A('v_add_u32 v3, v2, v26'); A(f'ds_write_b16 v3, v28 offset:{HL}')
    A('s_waitcnt lgkmcnt(0)'); A('s_barrier')
    stamp(14)
    A('s_cmp_ge_u32 s13, 4'); A('s_cbranch_scc1 L_w_f3')
    vec_reads(128, 'v25', 14, HL)
    for s in range(14):
        A(f's_waitcnt lgkmcnt({13-s})'); mfma(28, 64+4*s, 128+4*s, s == 0)
    A('v_and_b32 v3, 3, v0'); A('v_cmp_eq_u32 s[36:37], 1, v3'); A('v_cmp_eq_u32 s[38:39], 2, v3'); A('v_cmp_eq_u32 vcc, 3, v3')
    A('s_lshl_b32 s48, s13, 4'); A('v_lshl_add_u32 v4, v17, 2, v3'); A('v_lshl_add_u32 v4, v4, 1, v2'); A('v_add_u32 v4, s48, v4')
    A('v_cndmask_b32 v28, v28, v29, s[36:37]'); A('v_cndmask_b32 v30, v30, v31, vcc'); A('s_or_b64 vcc, vcc, s[38:39]'); A('v_cndmask_b32 v28, v28, v30, vcc')
    R('v28', 'v28'); A('v_mov_b32 v29, v28'); A('v_permlane32_swap_b32 v28, v29')
    A('v_mul_f32 v30, v28, v28'); A('v_mov_b32 v31, 0xc0135761'); A('v_fmac_f32 v31, 0xbdd2d3e8, v30'); A('v_mul_f32 v30, v28, v31')
    A('v_exp_f32 v30, v30'); A('v_add_f32 v30, 1.0, v30'); A('v_rcp_f32 v30, v30'); A('v_mul_f32 v28, v28, v30'); R('v28', 'v28'); A('v_mul_f32 v28, v28, v29'); A('v_cvt_pk_bf16_f32 v28, v28, v28')
    A('s_mov_b64 exec, 0x000f000f'); A(f'ds_write_b16 v4, v28 offset:{ACT}'); A('s_mov_b64 exec, -1')
    A('L_w_f3:')
    A('s_waitcnt lgkmcnt(0)'); A('s_barrier')
    for t in range(4): A(f'ds_read_b128 v[{128+4*t}:{131+4*t}], v{50+t}')
    for t in range(4):
        A(f's_waitcnt lgkmcnt({3-t})'); mfma(28, 184+4*t, 128+4*t, t == 0)
    A('s_mov_b32 exec_lo, 0x000f000f'); A('s_mov_b32 exec_hi, 0x000f000f')
    A('buffer_store_dwordx4 v[28:31], v54, s[8:11], s49 offen sc1')
    A('s_mov_b64 exec, -1')
    stamp(15)
    A('L_w_end:')
    if prof:
        A('L_fin:')
        A('s_mov_b64 exec, -1')
        A('s_lshl_b32 s36, s2, 3'); A('s_add_u32 s36, s36, s4'); A('s_lshl_b32 s36, s36, 8'); A(f's_add_u32 s36, s36, {STAMP}')
        A('v_lshlrev_b32 v3, 2, v0'); A('buffer_store_dword v250, v3, s[8:11], s36 offen')
    A('L_end:'); A('s_endpgm')
    A('L_codeend:')
    hdr = [f'; @launch grid=(256,1,1) block=(512,1,1) lds={LDS_BYTES}', '.amdgcn_target "amdgcn-amd-amdhsa--gfx950"', '.text', f'.globl {KN}', '.p2align 8', f'.type {KN},@function', f'{KN}:']
    ftr = ['.section .rodata,"a"', '.p2align 6', f'.amdhsa_kernel {KN}', '  .amdhsa_next_free_vgpr 256', '  .amdhsa_next_free_sgpr 96', '  .amdhsa_accum_offset 256', '  .amdhsa_group_segment_fixed_size 0', '  .amdhsa_kernarg_size 112',
           '  .amdhsa_user_sgpr_count 2', '  .amdhsa_user_sgpr_kernarg_segment_ptr 1', '  .amdhsa_system_sgpr_workgroup_id_x 1', '  .amdhsa_float_denorm_mode_32 3', '.end_amdhsa_kernel']
    return '\n'.join(hdr + pad(L) + ftr) + '\n'

if __name__ == '__main__':
    import struct, math
    f = lambda x: hex(struct.unpack('<I', struct.pack('<f', x))[0])
    k = -2*math.log2(math.e)*math.sqrt(2/math.pi)
    print(f(k), f(k*0.044715), f(math.log2(math.e)/16), f(1/448), f(1e-5), file=sys.stderr)
    open('k_prof.s', 'w').write(gen(prof=True))
    open('k.s', 'w').write(gen())
```
